```python
import torch

def _softmax(x, axis=-1):
    return torch.softmax(x, dim=axis)
def _gelu(x):
    return torch.nn.functional.gelu(x, approximate="tanh")
def _silu(x):
    return torch.nn.functional.silu(x)
def _sigmoid(x):
    return torch.sigmoid(x)
def _layernorm(x, axis=-1, eps=1e-5):
    m = x.mean(dim=axis, keepdim=True)
    v = x.var(dim=axis, keepdim=True, unbiased=False)
    return (x - m) / torch.sqrt(v + eps)
def _scatter_add(tgt, idx, src, axis=0):
    return tgt.clone().index_add_(axis, idx, src)
def _segment_sum(src, seg, n):
    out = torch.zeros((n,) + src.shape[1:], dtype=src.dtype)
    return out.index_add_(0, seg, src)
def _pad(x, pw):
    flat = tuple(v for pair in reversed(pw) for v in pair)
    return torch.nn.functional.pad(x, flat)

kernel_name = 'standalone__gqa_block_cached__near_ridge'

def setup_inputs():

    _w = (lambda a: (lambda t: t.to(torch.bfloat16) if t.is_floating_point() else t)(torch.as_tensor(a)))
    B, Sq, D = 8, 48, 512
    Hq, Hkv, Sk, Dh = 32, 8, 2048, 128
    assert Hq % Hkv == 0, (Hq, Hkv)
    return {
        "x": _w((lambda *s: torch.randn(*s, dtype=torch.bfloat16) * 0.8)(B, Sq, D)),
        "k_cache": _w((lambda *s: torch.randn(*s, dtype=torch.bfloat16) * 0.8)(B, Hkv, Sk, Dh)),
        "v_cache": _w((lambda *s: torch.randn(*s, dtype=torch.bfloat16) * 0.05)(B, Hkv, Sk, Dh)),
        "wq": _w((lambda *s: torch.randn(*s, dtype=torch.bfloat16) * 0.8)(D, Hq * Dh) * (D ** -0.5)),
        "wo": _w((lambda *s: torch.randn(*s, dtype=torch.bfloat16) * 0.05)(Hq * Dh, D) * ((Hq * Dh) ** -0.5)),
    }

def reference(x, k_cache, v_cache, wq, wo):
    B, Sq, D = x.shape
    Hq, Dh = 32, 128
    Hkv = k_cache.shape[1]
    rep = Hq // Hkv
    q = (lambda x, *d: x.permute(*d))((x @ wq).reshape(B, Sq, Hq, Dh), 0, 2, 1, 3)
    k = (lambda x, n, axis: torch.repeat_interleave(x, n, dim=axis))(k_cache, rep, axis=1)
    v = (lambda x, n, axis: torch.repeat_interleave(x, n, dim=axis))(v_cache, rep, axis=1)
    scores = torch.einsum("bhqd,bhkd->bhqk", q, k) * (Dh ** -0.5)
    p = _softmax(scores, axis=-1)
    o = torch.einsum("bhqk,bhkd->bhqd", p, v)
    return (lambda x, *d: x.permute(*d))(o, 0, 2, 1, 3).reshape(B, Sq, Hq * Dh) @ wo
```

```python
import sys
out = sys.argv[1]
OPT = dict(prio=0, sched=0, dma=1, bar=1, stag=0)
for a in sys.argv[2:]:
    k, v = a.split("="); OPT[k] = int(v)
KN = "standalone__gqa_block_cached__near_ridge_kernel"
L = []
def A(s): L.append("  " + s)
def LAB(s): L.append(s + ":")
def vr(b, n=4): return "v[%d:%d]" % (b, b + n - 1)
def mfma(d, a, b, c): A("v_mfma_f32_16x16x32_bf16 %s, %s, %s, %s" % (vr(d), vr(a), vr(b), vr(c)))
L.append("; @launch grid=(256,1,1) block=(512,1,1) lds=163840")
L.append('.amdgcn_target "amdgcn-amd-amdhsa--gfx950"')
L.append(".text\n.globl %s\n.p2align 8\n.type %s,@function\n%s:" % (KN, KN, KN))
A("s_cmp_ge_u32 s2, 256"); A("s_cbranch_scc1 L_END")
A("s_load_dwordx16 s[4:19], s[0:1], 0")
A("v_lshrrev_b32 v5, 6, v0"); A("v_and_b32 v6, 63, v0"); A("s_nop 0"); A("v_readfirstlane_b32 s3, v5")
A("s_waitcnt lgkmcnt(0)")
for d, p in ((20, 6), (24, 8)):
    A("s_mov_b32 s%d, s%d" % (d, p)); A("s_and_b32 s%d, s%d, 0xffff" % (d + 1, p + 1)); A("s_mov_b32 s%d, 0x2000000" % (d + 2)); A("s_mov_b32 s%d, 0x20000" % (d + 3))
A("s_mov_b32 s44, s18"); A("s_and_b32 s45, s19, 0xffff"); A("s_mov_b32 s46, 0x10000000"); A("s_mov_b32 s47, 0x20000")
O, Q, K, V, S, NM, LL = 8, 104, 152, 184, 216, 240, 252
AVK, VR0, VR1, VK, VV = 0, 1, 2, 3, 4
A("v_lshlrev_b32 v3, 4, v6"); A("v_mov_b32 v4, v3")
A("s_lshl_b32 s65, s2, 17"); A("s_lshl_b32 s54, s3, 10"); A("s_add_u32 s65, s65, s54"); A("s_mov_b32 s67, s54")
for i in range(8):
    A("s_mov_b32 m0, s67"); A("s_nop 0"); A("buffer_load_dwordx4 v3, s[20:23], s65 offen lds")
    A("s_add_u32 m0, s67, 0x10000"); A("s_nop 0"); A("buffer_load_dwordx4 v3, s[24:27], s65 offen lds")
    A("s_add_u32 s67, s67, 8192"); A("s_add_u32 s65, s65, 8192")
for i in range(12): A("buffer_load_dwordx4 %s, v3, s[20:23], s65 offen offset:%d" % (vr(Q + 4 * i), (i % 4) * 1024))
for r in range(O, O + 96): A("v_mov_b32 v%d, 0" % r)
for r in range(K, 256): A("v_mov_b32 v%d, 0" % r)
for r in range(NM, NM + 12): A("v_mov_b32 v%d, -2.0" % r)
A("s_lshr_b32 s55, s3, 2"); A("s_lshl_b32 s55, s55, 13")
A("v_lshlrev_b32 v0, 4, v6"); A("v_add_u32 v0, s55, v0")
A("v_lshlrev_b32 v1, 3, v6"); A("v_add_u32 v1, s55, v1"); A("v_add_u32 v1, 0x10000, v1"); A("v_xor_b32 v2, 512, v1")
A("s_and_b32 s54, s3, 3"); A("s_lshl_b32 s54, s54, 11"); A("s_add_u32 s67, s54, s55"); A("s_add_u32 s68, s67, 0x10000")
A("s_mov_b32 s66, s65"); A("s_mov_b32 s59, 0xffff"); A("v_mov_b32 v7, 0x10000")
A("s_waitcnt vmcnt(0)"); A("s_barrier")
for r in range(Q, Q + 48):
    A("v_max_u32 v5, 0x10001000, v%d" % r)
    A("v_or_b32 v5, 0x10001000, v%d" % r)
    A("v_subrev_u32 v%d, 0x01800180, v5" % r)
A("s_mov_b32 s64, 0")
if OPT["prio"]:
    A("s_cmp_lt_u32 s3, 4"); A("s_cbranch_scc1 L_np"); A("s_setprio 1"); LAB("L_np")
A("s_memtime s[82:83]"); A("s_memrealtime s[86:87]"); A("s_waitcnt lgkmcnt(0)")
def kf(a, k): return K + (a * 4 + k) * 4
def slot(ty):
    j = ty; jq = (ty + 1) % 3; jp = (ty + 2) % 3
    Sx = S + j * 8
    M = []
    for a in range(2):
        for k in range(4):
            M.append((S + jq * 8 + a * 4, kf(a, k), Q + (jq * 4 + k) * 4, (NM + 4 * jq) if k == 0 else S + jq * 8 + a * 4))
    for t in range(8):
        M.append((O + (jp * 8 + t) * 4, V + 4 * t, S + jp * 8, O + (jp * 8 + t) * 4))
    e = lambda i: A("v_exp_f32 v%d, v%d" % (Sx + i, Sx + i))
    ad = lambda i: A("v_add_f32 v%d, v%d, v%d" % (LL + j, LL + j, Sx + i))
    cv = lambda i: A("v_cvt_pk_bf16_f32 v%d, v%d, v%d" % (Sx + i, Sx + 2 * i, Sx + 2 * i + 1))
    G = [[lambda: e(0)], [lambda: e(1)], [lambda: e(2)], [lambda: ad(0), lambda: ad(1)], [lambda: e(3)], [lambda: cv(0), lambda: ad(2)],
         [lambda: e(4)], [lambda: ad(3), lambda: cv(1)], [lambda: e(5)], [lambda: e(6)], [lambda: ad(4), lambda: ad(5)], [lambda: e(7)],
         [lambda: cv(2), lambda: ad(6)], [lambda: ad(7), lambda: cv(3)], [], []]
    X = [[] for _ in range(16)]
    if ty == 1:
        for f in range(8):
            X[f].append(lambda f=f: A("ds_read_b128 %s, v0 offset:%d" % (vr(K + 4 * f), f * 1024)))
    if ty == 0:
        for t in range(8):
            X[8 + t].append(lambda t=t: A("ds_read_b64_tr_b16 %s, v%d offset:%d" % (vr(V + 4 * t, 2), 1 + (t & 1), t * 1024)))
            if OPT["sched"] == 0: X[8 + t].append(lambda t=t: A("ds_read_b64_tr_b16 %s, v%d offset:%d" % (vr(V + 4 * t + 2, 2), 1 + (t & 1), t * 1024 + 4096 * 0 + 512 * 0)))
    if ty == 1 and OPT["sched"] == 1:
        for t in range(8):
            X[t].append(lambda t=t: A("ds_read_b64_tr_b16 %s, v%d offset:%d" % (vr(V + 4 * t + 2, 2), 1 + (t & 1), t * 1024)))
    if ty == 2:
        def bar():
            A("s_waitcnt vmcnt(8) lgkmcnt(0)")
            if OPT["bar"]: A("s_barrier")
        X[3].append(bar)
        if OPT["dma"]:
            X[5].append(lambda: A("s_mov_b32 m0, s67")); X[6].append(lambda: A("buffer_load_dwordx4 v3, s[20:23], s65 offen nt lds"))
            X[7].append(lambda: A("s_add_u32 m0, s67, 896")); X[8].append(lambda: A("buffer_load_dwordx4 v3, s[20:23], s65 offen offset:128 nt lds"))
            X[9].append(lambda: A("s_mov_b32 m0, s68")); X[10].append(lambda: A("buffer_load_dwordx4 v4, s[24:27], s66 offen nt lds"))
            X[11].append(lambda: A("s_add_u32 m0, s68, 896")); X[12].append(lambda: A("buffer_load_dwordx4 v4, s[24:27], s66 offen offset:128 nt lds"))
            X[13].append(lambda: (A("s_add_u32 s65, s65, 2048"), A("s_add_u32 s66, s66, 2048"), A("s_add_u32 s67, s67, 0x4000")))
            X[14].append(lambda: (A("s_bitset0_b32 s67, 16"), A("s_add_u32 s68, s67, 0x10000")))
        G[14] = [lambda: A("v_add_u32 v0, 0x4000, v0"), lambda: A("v_and_b32 v0, 0xffff, v0")]
        G[15] = [lambda: A("v_add_u32 v1, 0x4000, v1"), lambda: A("v_and_or_b32 v1, v1, s59, v7"), lambda: A("v_xor_b32 v2, 512, v1")]
    for i in range(16):
        if ty == 2 and i == 0: A("s_waitcnt lgkmcnt(0)")
        if ty == 1 and i == 8: A("s_waitcnt lgkmcnt(%d)" % (8 if OPT["sched"] == 0 else 4))
        if ty == 1 and i == 12 and OPT["sched"] == 1: A("s_waitcnt lgkmcnt(0)")
        mfma(*M[i])
        for g in G[i]: g()
        for x in X[i]: x()
A(".p2align 6")
LAB("L_LOOP")
for ty in range(3): slot(ty)
A("s_add_u32 s64, s64, 1"); A("s_cmp_lt_u32 s64, 8"); A("s_cbranch_scc1 L_LOOP")
A("s_memtime s[84:85]"); A("s_memrealtime s[88:89]"); A("s_waitcnt vmcnt(0) lgkmcnt(0)")
A("s_sub_u32 s84, s84, s82"); A("s_sub_u32 s88, s88, s86")
A("v_mov_b32 v8, s84"); A("v_mov_b32 v9, s88"); A("v_mov_b32 v10, 0")
A("s_lshl_b32 s54, s2, 7"); A("s_lshl_b32 s55, s3, 3"); A("s_add_u32 s54, s54, s55"); A("s_add_u32 s54, s54, 0x0F000000")
A("s_mov_b64 exec, 1"); A("buffer_store_dwordx2 v[8:9], v10, s[44:47], s54 offen")
LAB("L_END"); A("s_endpgm")
L.append("""
.section .rodata,"a"
.p2align 6
.amdhsa_kernel %s
  .amdhsa_next_free_vgpr 256
  .amdhsa_next_free_sgpr 102
  .amdhsa_accum_offset 256
  .amdhsa_group_segment_fixed_size 0
  .amdhsa_kernarg_size 64
  .amdhsa_user_sgpr_count 2
  .amdhsa_user_sgpr_kernarg_segment_ptr 1
  .amdhsa_system_sgpr_workgroup_id_x 1
.end_amdhsa_kernel""" % KN)
open(out, "w").write("\n".join(L) + "\n")
```
